```python
import torch

def _softmax(x, axis=-1):
    return torch.softmax(x, dim=axis)
def _gelu(x):
    return torch.nn.functional.gelu(x, approximate="tanh")
def _silu(x):
    return torch.nn.functional.silu(x)
def _sigmoid(x):
    return torch.sigmoid(x)
def _layernorm(x, axis=-1, eps=1e-5):
    m = x.mean(dim=axis, keepdim=True)
    v = x.var(dim=axis, keepdim=True, unbiased=False)
    return (x - m) / torch.sqrt(v + eps)
def _scatter_add(tgt, idx, src, axis=0):
    return tgt.clone().index_add_(axis, idx, src)
def _segment_sum(src, seg, n):
    out = torch.zeros((n,) + src.shape[1:], dtype=src.dtype)
    return out.index_add_(0, seg, src)
def _pad(x, pw):
    flat = tuple(v for pair in reversed(pw) for v in pair)
    return torch.nn.functional.pad(x, flat)

kernel_name = 'standalone__mha_block_cached__near_ridge'

def setup_inputs():

    _w = (lambda a: (lambda t: t.to(torch.bfloat16) if t.is_floating_point() else t)(torch.as_tensor(a)))
    B, Sq, D = 32, 192, 512
    H, Sk, Dh = 32, 512, 128
    return {
        "x": _w((lambda *s: torch.randn(*s, dtype=torch.bfloat16) * 0.8)(B, Sq, D)),
        "k_cache": _w((lambda *s: torch.randn(*s, dtype=torch.bfloat16) * 0.8)(B, H, Sk, Dh)),
        "v_cache": _w((lambda *s: torch.randn(*s, dtype=torch.bfloat16) * 0.05)(B, H, Sk, Dh)),
        "wq": _w((lambda *s: torch.randn(*s, dtype=torch.bfloat16) * 0.8)(D, H * Dh) * (D ** -0.5)),
        "wo": _w((lambda *s: torch.randn(*s, dtype=torch.bfloat16) * 0.05)(H * Dh, D) * ((H * Dh) ** -0.5)),
    }

def reference(x, k_cache, v_cache, wq, wo):
    B, Sq, D = x.shape
    H, Dh = 32, 128
    q = (lambda x, *d: x.permute(*d))((x @ wq).reshape(B, Sq, H, Dh), 0, 2, 1, 3)
    scores = torch.einsum("bhqd,bhkd->bhqk", q, k_cache) * (Dh ** -0.5)
    p = _softmax(scores, axis=-1)
    o = torch.einsum("bhqk,bhkd->bhqd", p, v_cache)
    return (lambda x, *d: x.permute(*d))(o, 0, 2, 1, 3).reshape(B, Sq, H * Dh) @ wo
```

```python
import sys
KN = "standalone__mha_block_cached__near_ridge_kernel"
def header(grid, block, lds):
    return f"""; @launch grid=({grid},1,1) block=({block},1,1) lds={lds}
.amdgcn_target "amdgcn-amd-amdhsa--gfx950"
.text
.globl {KN}
.p2align 8
.type {KN},@function
{KN}:
"""
def footer(vgpr, accum):
    return f"""
.section .rodata,"a"
.p2align 6
.amdhsa_kernel {KN}
  .amdhsa_next_free_vgpr {vgpr}
  .amdhsa_next_free_sgpr 102
  .amdhsa_accum_offset {accum}
  .amdhsa_group_segment_fixed_size 0
  .amdhsa_kernarg_size 64
  .amdhsa_user_sgpr_count 2
  .amdhsa_user_sgpr_kernarg_segment_ptr 1
  .amdhsa_system_sgpr_workgroup_id_x 1
.end_amdhsa_kernel
"""
def prologue(grid):
    s = f"""
    s_cmp_ge_u32 s2, {grid}
    s_cbranch_scc1 L_end
    s_load_dwordx2 s[4:5], s[0:1], 8     ; k
    s_load_dwordx2 s[6:7], s[0:1], 56    ; ws
    s_waitcnt lgkmcnt(0)
    s_mov_b32 s8, s4
    s_mov_b32 s9, s5
    s_mov_b32 s10, 0x8000000
    s_mov_b32 s11, 0x20000
    s_mov_b32 s12, s6
    s_mov_b32 s13, s7
    s_mov_b32 s14, 0x20000000
    s_mov_b32 s15, 0x20000
    v_lshlrev_b32 v1, 4, v0
    s_lshl_b32 s3, s2, 16
    v_add_u32 v1, s3, v1
"""
    for i in range(16):
        s += f"    buffer_load_dwordx4 v[{64+4*i}:{64+4*i+3}], v1, s[8:11], 0 offen offset:{0}\n"
        s += f"    v_add_u32 v1, 0x2000, v1\n"
    s += "    s_waitcnt vmcnt(0)\n"
    s += "    v_lshlrev_b32 v2, 4, v0\n"
    for i in range(8):
        s += f"    ds_write_b128 v2, v[{64+4*i}:{64+4*i+3}] offset:{i*8192}\n"
    s += "    s_waitcnt lgkmcnt(0)\n    s_barrier\n"
    s += "    v_and_b32 v2, 63, v0\n    v_lshlrev_b32 v2, 4, v2\n"
    s += "    v_and_b32 v3, 63, v0\n    v_lshlrev_b32 v3, 3, v3\n"
    for i in range(128, 256):
        s += f"    v_mov_b32 v{i}, 0\n"
    for i in range(4, 64):
        s += f"    v_mov_b32 v{i}, 0\n"
    return s
def stamps_begin():
    return "    s_barrier\n    s_memtime s[20:21]\n    s_memrealtime s[24:25]\n    s_waitcnt lgkmcnt(0)\n"
def stamps_end():
    return """    s_memtime s[22:23]
    s_memrealtime s[26:27]
    s_waitcnt lgkmcnt(0)
    v_mov_b32 v4, s20
    v_mov_b32 v5, s21
    v_mov_b32 v6, s22
    v_mov_b32 v7, s23
    v_mov_b32 v8, s24
    v_mov_b32 v9, s25
    v_mov_b32 v10, s26
    v_mov_b32 v11, s27
    s_lshl_b32 s3, s2, 5
    v_mov_b32 v12, s3
    v_cmp_eq_u32 vcc, 0, v0
    s_and_saveexec_b64 s[30:31], vcc
    s_cbranch_execz L_nost
    buffer_store_dwordx4 v[4:7], v12, s[12:15], 0 offen
    buffer_store_dwordx4 v[8:11], v12, s[12:15], 0 offen offset:16
L_nost:
    s_waitcnt vmcnt(0)
L_end:
    s_endpgm
"""
def body(shape, nm, fillers, iters):
    s = f"    s_mov_b32 s16, {iters}\n.p2align 6\nL_loop:\n"
    fi = 0
    tmp = 0
    for m in range(nm):
        if shape == 16:
            d = 128 + 4 * (m % 24)
            a = 64 + 4 * (m % 8); b = 96 + 4 * ((m // 3) % 8)
            s += f"    v_mfma_f32_16x16x32_bf16 v[{d}:{d+3}], v[{a}:{a+3}], v[{b}:{b+3}], v[{d}:{d+3}]\n"
        else:
            d = 128 + 16 * (m % 8)
            a = 64 + 4 * (m % 8); b = 96 + 4 * ((m // 3) % 8)
            s += f"    v_mfma_f32_32x32x16_bf16 v[{d}:{d+15}], v[{a}:{a+3}], v[{b}:{b+3}], v[{d}:{d+15}]\n"
        for k in fillers[m % len(fillers)]:
            r = 4 + (tmp % 24); tmp += 1
            if k == 'a': s += f"    v_add_f32 v{r}, v{64 + tmp % 32}, v{r}\n"
            elif k == 'e': s += f"    v_exp_f32 v{r}, v{64 + tmp % 32}\n"
            elif k == 'c': s += f"    v_cvt_pk_bf16_f32 v{r}, v{64 + tmp % 32}, v{65 + tmp % 32}\n"
            elif k == 'p':
                r = 4 + 2 * (tmp % 12)
                s += f"    v_pk_add_f32 v[{r}:{r+1}], v[{64 + 2*(tmp % 16)}:{65 + 2*(tmp % 16)}], v[{r}:{r+1}]\n"
            elif k == 'd':
                s += f"    v_dot2c_f32_bf16 v{r}, v{64 + tmp % 32}, v{96 + tmp % 32}\n"
            elif k == 'L':
                rr = 32 + 4 * (tmp % 8)
                s += f"    ds_read_b128 v[{rr}:{rr+3}], v2 offset:{(tmp % 32) * 1024}\n"
            elif k == 'T':
                rr = 32 + 2 * (tmp % 16)
                s += f"    ds_read_b64_tr_b16 v[{rr}:{rr+1}], v3 offset:{(tmp % 64) * 512}\n"
            elif k == 'w': s += "    s_waitcnt lgkmcnt(4)\n"
            elif k == 'n': s += "    s_nop 0\n"
            elif k == 's': s += "    s_add_u32 s17, s17, 1\n"
    s += "    s_sub_u32 s16, s16, 1\n    s_cmp_lg_u32 s16, 0\n    s_cbranch_scc1 L_loop\n"
    s += "    s_waitcnt lgkmcnt(0)\n    s_nop 15\n"
    return s
def make(name, shape, nm, fillers, iters, block=256, grid=256, lds=98304):
    s = header(grid, block, lds) + prologue(grid) + stamps_begin() + body(shape, nm, fillers, iters) + stamps_end() + footer(256, 256)
    open(f"mb/{name}.s", "w").write(s)
if __name__ == "__main__":
    names = []
    def mk(name, *a, **k):
        make(name, *a, **k); names.append(name)
    for blk in (256, 512):
        w = blk // 256
        it16 = 6144 // 48 // w; it32 = 3072 // 24 // w
        for f in ['', 'a', 'aa', 'aaa', 'e', 'ea', 'L', 'La', 'Ta', 'TT', 'p', 'pa', 'd', 'ca', 'Laa']:
            mk(f"m16_{f or '0'}_b{blk}", 16, 48, [list(f)], it16, block=blk)
        for f in ['', 'aaaa', 'aaaaa', 'aaaaaa', 'aaaaaaa', 'eeaa', 'eea', 'eeaL', 'eeacL', 'eeaTT', 'ppaa', 'eeeaa', 'eeacTT', 'aaaaaaaa', 'eeee']:
            mk(f"m32_{f or '0'}_b{blk}", 32, 24, [list(f)], it32, block=blk)
    print(" ".join(f"mb/{n}.s" for n in names))
```

```python
import sys
sys.path.insert(0, "tools")
from gen_mb import header, footer, prologue
def mk(name, pf, tour=False):
    s = header(256, 256, 163840) + prologue(256)
    if pf:
        s += "    s_getpc_b64 s[56:57]\n    v_lshlrev_b32 v4, 6, v0\n"
        for i in range(4): s += "    global_load_dword v5, v4, s[56:57]\n    v_add_u32 v4, 16384, v4\n"
        s += "    s_waitcnt vmcnt(0)\n"
    s += ("    s_mov_b64 exec, 0\n    s_branch L_pg1\n" if tour else "") + "L_pg10:\n    s_mov_b64 exec, -1\n"
    s += "    s_barrier\n    s_branch L_go\n.p2align 12\nL_go:\n"
    n = 40
    for k in range(n):
        if k % 4 == 0 and k: s += f"L_pg{k // 4}:\n    s_cbranch_execz L_pg{k // 4 + 1}\n    s_nop 0\n"
        s += f"    s_memtime s[{16+2*k}:{17+2*k}]\n"
        for m in range(64):
            d = 128 + 4 * (m % 24); a = 64 + 4 * ((m // 3) % 8); b = 96 + 4 * (m % 8)
            s += f"    v_mfma_f32_16x16x32_bf16 v[{d}:{d+3}], v[{a}:{a+3}], v[{b}:{b+3}], v[{d}:{d+3}]\n"
            if m != 0 and not (m == 1 and k % 4 == 0 and k): s += f"    v_cvt_pk_bf16_f32 v{4 + m % 24}, v{64 + m % 32}, v{65 + m % 32}\n"
    s += "    s_waitcnt lgkmcnt(0)\n    v_mov_b32 v61, 0\n"
    for k in range(n): s += f"    v_writelane_b32 v61, s{16+2*k}, {k}\n"
    s += """    v_and_b32 v4, 63, v0
    v_lshlrev_b32 v4, 2, v4
    v_lshrrev_b32 v5, 6, v0
    v_lshlrev_b32 v5, 8, v5
    v_add_u32 v4, v4, v5
    s_lshl_b32 s3, s2, 10
    buffer_store_dword v61, v4, s[12:15], s3 offen
    s_waitcnt vmcnt(0)
L_end:
    s_endpgm
.fill 8192, 4, 0xbf800000
    s_endpgm
""" + footer(256, 256)
    open(f"mb/{name}.s", "w").write(s)
mk("ic_pf", True); mk("ic_tour", True, True); mk("ic_tour_nopf", False, True)
```

```python
import sys
sys.path.insert(0, "tools")
from gen_mb import header, footer, prologue
names = []
def body(nm, dma, lab, iters, real=False, step=6, cap=None, skip=0):
    fl = [['e'], ['T', 'c'], ['e'], ['T'], ['e'], ['L', 'c']]
    s = f"    s_mov_b32 s16, {iters}\n.p2align 6\n{lab}:\n"
    tmp = 0; di = 0
    for m in range(nm):
        d = 128 + 4 * (m % 24); a = 64 + 4 * ((m // 3) % 8); b = 96 + 4 * (m % 8)
        s += f"    v_mfma_f32_16x16x32_bf16 v[{d}:{d+3}], v[{a}:{a+3}], v[{b}:{b+3}], v[{d}:{d+3}]\n"
        if dma and skip and m == 0:
            s += f"    s_add_u32 s39, s39, 1\n    s_cmp_eq_u32 s39, {skip}\n    s_cselect_b32 s39, 0, s39\n    s_cselect_b32 s41, s42, s33\n    s_cselect_b32 m0, s43, s34\n    s_cselect_b32 s40, 0, s48\n"; continue
        if dma and cap is not None and m % step == 1 and di < 8:
            s += f'    s_waitcnt vmcnt({str(cap)[di % len(str(cap))]})\n'; continue
        if dma and m % step == 2 and di < 8:
            srd = "s[8:11]" if di < 4 else "s[44:47]"
            s += f"    buffer_load_dwordx4 v{56 + (di & 3) if real else 62}, {srd}, {'s41' if skip else 's33'} offen offset:{(di & 3) * 1024} nt lds\n"; di += 1; continue
        if m == nm - 8: s += ("    s_add_u32 s33, s33, s40\n" if (skip and dma) else "    s_add_u32 s33, s33, 16384\n") + "    s_sub_u32 s16, s16, 1\n"; continue
        if m == nm - 7: s += "    s_cmp_lg_u32 s16, 0\n"; continue
        if m == nm - 5: s += "    s_waitcnt vmcnt(16)\n"; continue
        if m == nm - 3: s += "    s_barrier\n"; continue
        if m == nm - 1: continue
        for k in fl[m % 6]:
            r = 4 + (tmp % 24); tmp += 1
            if k == 'e': s += f"    v_exp_f32 v{r}, v{64 + tmp % 32}\n"
            elif k == 'c': s += f"    v_cvt_pk_bf16_f32 v{r}, v{64 + tmp % 32}, v{65 + tmp % 32}\n"
            elif k == 'L': rr = 32 + 4 * (tmp % 6); s += f"    ds_read_b128 v[{rr}:{rr+3}], v2 offset:{(tmp % 32) * 1024}\n"
            elif k == 'T': rr = 32 + 2 * (tmp % 12); s += f"    ds_read_b64_tr_b16 v[{rr}:{rr+1}], v3 offset:{(tmp % 64) * 512}\n"
    return s + f"    s_cbranch_scc1 {lab}\n"
def mk(name, nm, pre=16, real=False, remap=False, step=6, cap=None, skip=0, stag=False, iters=8, vlag=0, blk=0):
    s = header(256, 256, 163840) + prologue(256)
    s += """    s_load_dwordx2 s[44:45], s[0:1], 16
    s_waitcnt lgkmcnt(0)
    s_sub_u32 s44, s44, @VLAG@
    s_subb_u32 s45, s45, 0
    s_mov_b32 s46, 0x8000000
    s_mov_b32 s47, 0x20000
    v_and_b32 v62, 63, v0
    v_lshlrev_b32 v62, 4, v62
    v_lshrrev_b32 v63, 6, v0
    v_lshlrev_b32 v63, 12, v63
    v_add_u32 v62, v62, v63
    v_readfirstlane_b32 s34, v0
    s_lshr_b32 s37, s34, 6
    s_lshl_b32 s34, s37, 12
    s_add_u32 s34, s34, 65536
    s_mov_b32 m0, s34
    v_mov_b32 v61, 0
    v_and_b32 v4, 63, v0
    v_lshrrev_b32 v5, 3, v4
    v_and_b32 v6, 7, v4
    v_lshlrev_b32 v5, 8, v5
    v_lshl_add_u32 v5, v6, 4, v5
    s_lshr_b32 s38, s37, 1
    s_lshl_b32 s38, s38, 13
    s_and_b32 s39, s37, 1
    s_lshl_b32 s39, s39, 7
    s_add_u32 s38, s38, s39
    v_add_u32 v56, s38, v5
    v_add_u32 v57, 1024, v56
    v_add_u32 v58, 2048, v56
    v_add_u32 v59, 3072, v56
"""
    st = lambda i: f"    s_waitcnt lgkmcnt(0)\n    s_memrealtime s[98:99]\n    s_memtime s[100:101]\n    s_waitcnt lgkmcnt(0)\n    v_writelane_b32 v61, s98, {2*i}\n    v_writelane_b32 v61, s100, {2*i+1}\n"
    s += "    s_mov_b32 s42, 0x7ff00000\n    s_mov_b32 s43, 0x30000\n    s_mov_b32 s48, 16384\n    s_mov_b32 s39, 0\n"
    if stag: s += f"    s_lshr_b32 s39, s2, 3\n    s_mul_i32 s38, s39, {(65536 + skip - 1) // skip}\n    s_lshr_b32 s38, s38, 16\n    s_mul_i32 s38, s38, {skip}\n    s_sub_u32 s39, s39, s38\n"
    s += st(0)
    if pre: s += body(96, False, "L_pre", pre)
    if remap: s += "    s_and_b32 s33, s2, 7\n    s_lshr_b32 s38, s2, 6\n    s_lshl_b32 s38, s38, 3\n    s_add_u32 s33, s33, s38\n    s_lshl_b32 s33, s33, 3\n    s_lshr_b32 s38, s2, 3\n    s_and_b32 s38, s38, 7\n    s_add_u32 s33, s33, s38\n    s_lshl_b32 s33, s33, 19\n" + st(1)
    else: s += "    s_lshl_b32 s33, s2, 19\n" + st(1)
    vb = "".join(f"    v_mul_f32 v{4 + k % 24}, v{64 + k % 32}, v{4 + k % 24}\n" for k in range(blk))
    for q in range(4): s += vb + body(nm, True, f"L_q{q}", iters, real, step, cap, skip) + st(2 + q)
    s += """    s_waitcnt vmcnt(0)
    v_and_b32 v4, 63, v0
    v_lshlrev_b32 v4, 2, v4
    s_lshl_b32 s3, s2, 2
    s_add_u32 s3, s3, s37
    s_lshl_b32 s3, s3, 8
    s_add_u32 s3, s3, 0x8000000
    buffer_store_dword v61, v4, s[12:15], s3 offen
    s_waitcnt vmcnt(0)
L_end:
    s_endpgm
""" + footer(256, 256)
    s = s.replace("s_mov_b32 s46, 0x8000000", f"s_mov_b32 s46, {0x8000000 - vlag}")
    s = s.replace("@VLAG@", str(-vlag & 0xffffffff)).replace("s_subb_u32 s45, s45, 0", "s_subb_u32 s45, s45, -1" if vlag else "s_subb_u32 s45, s45, 0")
    s = s.replace(".amdgcn_target", "; STAMPS start,pre,q0,q1,q2,end\n.amdgcn_target", 1)
    open(f"mb/{name}.s", "w").write(s); names.append(name)
mk("dip_104_c3", 104, real=True, remap=True, step=13, cap="3")
mk("dip_104_c3_b", 104, real=True, remap=True, step=13, cap="3", blk=170)
mk("dip_116_c3", 116, real=True, remap=True, step=14, cap="3")
mk("dip_116_c3_b", 116, real=True, remap=True, step=14, cap="3", blk=170)
mk("dip_122_c3", 122, real=True, remap=True, step=15, cap="3")
print(" ".join(f"mb/{n}.s" for n in names))
```

```python
import sys
sys.path.insert(0, "tools")
from gen_mb import header, footer, prologue, stamps_begin, stamps_end
names = []
def mk(name, fa, fb, fd, shiftb=0, shiftd=0):
    s = header(256, 256, 163840) + prologue(256)
    for i in range(96):
        s += f"    v_accvgpr_write_b32 a{i + shiftb}, v{64 + (i * 7) % 64}\n"
    for i in range(96 - 4): s += f"    v_mov_b32 v{160 + i + shiftb}, v{64 + (i * 7) % 64}\n"
    for i in range(48): s += f"    v_accvgpr_write_b32 a{104 + i + shiftd}, 0\n    v_mov_b32 v{104 + i + shiftd % 4}, 0\n"
    for i in range(32): s += f"    v_accvgpr_write_b32 a{200 + i}, v{64 + i}\n    v_mov_b32 v{32 + i}, v{64 + i}\n"
    s += stamps_begin() + "    s_mov_b32 s16, 64\n.p2align 6\nL_loop:\n"
    tmp = 0; seq = []
    for g in range(8):
        for m in range(12):
            tt, r = m // 6, m % 6
            qi, kk = r // 2, r % 2
            qt = qi if tt == 0 else 2 - qi; kk = kk ^ ((qi + tt) & 1)
            ks, t, j = ((g >> 1) * 2 + kk) % 7, (g & 1) * 2 + tt, tt * 2 + kk
            seq.append((12 * t + 4 * qt, 16 * (g & 1) + 4 * j, 12 * ks + 4 * qt))
    R = lambda f, lo, n=4: f"{f}[{lo}:{lo + n - 1}]"
    for m, (d, a, b) in enumerate(seq):
        D = R(fd, 104 + d + (shiftd if fd == 'a' else shiftd % 4)); A = R(fa, (200 if fa == 'a' else 32) + a); Bq = R(fb, (0 if fb == 'a' else 160) + b + shiftb)
        s += f"    v_mfma_f32_16x16x32_bf16 {D}, {A}, {Bq}, {D}\n"
        if m == 86: s += "    s_sub_u32 s16, s16, 1\n    s_cmp_lg_u32 s16, 0\n"; continue
        if m % 3 != 2 and m < 94:
            g = m // 12; rr = (200 if fa == 'a' else 32) + 16 * ((g + 1) & 1) + 2 * (tmp % 8); tmp += 1
            s += f"    ds_read_b64_tr_b16 {R(fa, rr, 2)}, v3 offset:{(tmp % 64) * 512}\n"
    s += "    s_cbranch_scc1 L_loop\n    s_waitcnt vmcnt(0) lgkmcnt(0)\n    s_nop 15\n"
    s += stamps_end() + footer(512, 256)
    open(f"mb/{name}.s", "w").write(s); names.append(name)
for fa, fb, fd in ("avv", "aav", "vav", "vvv", "aaa", "vva"):
    mk(f"rf_{fa}{fb}{fd}", fa, fb, fd)
mk("rf_vvv_b2", "v", "v", "v", shiftb=2)
mk("rf_aav_d2", "a", "a", "v", shiftd=2)
print(" ".join(f"mb/{n}.s" for n in names))
```
